```python
import torch

def _softmax(x, axis=-1):
    return torch.softmax(x, dim=axis)
def _gelu(x):
    return torch.nn.functional.gelu(x, approximate="tanh")
def _silu(x):
    return torch.nn.functional.silu(x)
def _sigmoid(x):
    return torch.sigmoid(x)
def _layernorm(x, axis=-1, eps=1e-5):
    m = x.mean(dim=axis, keepdim=True)
    v = x.var(dim=axis, keepdim=True, unbiased=False)
    return (x - m) / torch.sqrt(v + eps)
def _scatter_add(tgt, idx, src, axis=0):
    return tgt.clone().index_add_(axis, idx, src)
def _segment_sum(src, seg, n):
    out = torch.zeros((n,) + src.shape[1:], dtype=src.dtype)
    return out.index_add_(0, seg, src)
def _pad(x, pw):
    flat = tuple(v for pair in reversed(pw) for v in pair)
    return torch.nn.functional.pad(x, flat)

kernel_name = 'standalone__seq2seq_rnn_t_joint__speech'

def setup_inputs():

    _w = (lambda a: (lambda t: t.to(torch.bfloat16) if t.is_floating_point() else t)(torch.as_tensor(a)))
    B, T, D, K = 2, 4000, 512, 15
    U = 8
    sc = (1.0 / (K * D)) ** 0.5
    sd = (1.0 / D) ** 0.5
    return {
        "x": _w((lambda *s: torch.randn(*s, dtype=torch.bfloat16) * 0.4)(B, T, D) * 0.5),
        "w1": _w((lambda *s: torch.randn(*s, dtype=torch.bfloat16) * 3.2)(K, D, D) * sc),
        "w2": _w((lambda *s: torch.randn(*s, dtype=torch.bfloat16) * 3.2)(K, D, D) * sc),
        "g": _w((lambda *s: torch.randn(*s, dtype=torch.bfloat16) * 3.2)(B, U, D) * 0.5),
        "w_f": _w((lambda *s: torch.randn(*s, dtype=torch.bfloat16) * 3.2)(D, D) * sd),
        "w_g": _w((lambda *s: torch.randn(*s, dtype=torch.bfloat16) * 3.2)(D, D) * sd),
        "w_o": _w((lambda *s: torch.randn(*s, dtype=torch.bfloat16) * 3.2)(D, D) * sd),
    }

def reference(x, w1, w2, g, w_f, w_g, w_o):
    B, T, D = x.shape
    K = w1.shape[0]
    pad = K // 2
    xp = _pad(x, ((0,0),(pad,pad),(0,0)))
    h = torch.zeros_like(x)
    for i in range(K):
        h = h + torch.einsum("btc,cd->btd", xp[:, i:i+T, :], w1[i])
    h = _gelu(h)[:, ::2, :]
    T1 = h.shape[1]
    hp = _pad(h, ((0,0),(pad,pad),(0,0)))
    f = torch.zeros_like(h)
    for i in range(K):
        f = f + torch.einsum("btc,cd->btd", hp[:, i:i+T1, :], w2[i])
    f = _gelu(f)[:, ::2, :]
    fe = torch.einsum("btd,de->bte", f, w_f)
    ge = torch.einsum("bud,de->bue", g, w_g)
    j = torch.tanh(fe[:, :, None, :] + ge[:, None, :, :])
    return torch.einsum("btud,dv->btuv", j, w_o)
```

```python
class Emit:
    def __init__(self):
        self.lines = []
        self.vm = []
        self.lg = []
    def __call__(self, s):
        self.lines.append("    " + s)
    def label(self, s):
        self.lines.append(s + ":")
    def comment(self, s):
        self.lines.append("    ; " + s)
    def vmem(self, s, tag):
        self(s); self.vm.append(tag)
    def lds(self, s, tag):
        self(s); self.lg.append(tag)
    def _need(self, q, pred):
        last = -1
        for i, t in enumerate(q):
            if pred(t): last = i
        return last
    def wait_vm(self, pred, force=False):
        last = self._need(self.vm, pred)
        if last < 0:
            return
        n = len(self.vm) - 1 - last
        n = min(n, 63)
        self(f"s_waitcnt vmcnt({n})")
        self.vm = self.vm[len(self.vm) - n:] if n > 0 else []
    def wait_lg(self, pred):
        last = self._need(self.lg, pred)
        if last < 0:
            return
        n = len(self.lg) - 1 - last
        n = min(n, 15)
        self(f"s_waitcnt lgkmcnt({n})")
        self.lg = self.lg[len(self.lg) - n:] if n > 0 else []
    def wait_both(self, pvm, plg):
        lv = self._need(self.vm, pvm); ll = self._need(self.lg, plg)
        parts = []
        if lv >= 0:
            n = min(len(self.vm) - 1 - lv, 63); parts.append(f"vmcnt({n})")
            self.vm = self.vm[len(self.vm) - n:] if n > 0 else []
        if ll >= 0:
            n = min(len(self.lg) - 1 - ll, 15); parts.append(f"lgkmcnt({n})")
            self.lg = self.lg[len(self.lg) - n:] if n > 0 else []
        if parts:
            self("s_waitcnt " + " ".join(parts))
    def wait_all(self):
        self("s_waitcnt vmcnt(0) lgkmcnt(0)")
        self.vm = []; self.lg = []
    def text(self):
        return "\n".join(self.lines) + "\n"

def vr(b, n=1):
    return f"v{b}" if n == 1 else f"v[{b}:{b+n-1}]"
def ar(b, n=1):
    return f"a{b}" if n == 1 else f"a[{b}:{b+n-1}]"
def sr(b, n=1):
    return f"s{b}" if n == 1 else f"s[{b}:{b+n-1}]"

def kernel_header(name):
    return f""".globl {name}
.p2align 8
.type {name},@function
{name}:
"""
def kernel_desc(name, nvgpr, nsgpr, accum, wgy=False):
    s = f""".amdhsa_kernel {name}
  .amdhsa_next_free_vgpr {nvgpr}
  .amdhsa_next_free_sgpr {nsgpr}
  .amdhsa_accum_offset {accum}
  .amdhsa_group_segment_fixed_size 0
  .amdhsa_kernarg_size 80
  .amdhsa_user_sgpr_count 2
  .amdhsa_user_sgpr_kernarg_segment_ptr 1
  .amdhsa_system_sgpr_workgroup_id_x 1
"""
    if wgy: s += "  .amdhsa_system_sgpr_workgroup_id_y 1\n"
    s += "  .amdhsa_float_denorm_mode_32 3\n"
    s += ".end_amdhsa_kernel\n"
    return s
```

```python
import sys
sys.path.insert(0, 'gen')
from asmlib import *
from common import *
import conv3
def k1cfg(opt=None, map='cl', side=True):
    sd = dict(arg0=16, arg1=32, n0=1920, bytes0=15*512*1024, id0=0, slots=[(0, 8), (1, 30)]) if side else None
    return conv3.ConvCfg(mode='lds', BMeff=126, tpb=16, src_arg=0, src_off=0, Tin=4000, Tout=2000, w_arg=8, dst_off=H_OFF,
                         dst_bstride=2000*1024, nchunk=4, out='rows', map=map, opt=opt or {}, side=sd)
def k2cfg(opt=None, map='cl', RB=8):
    return conv3.ConvCfg(mode='dir', BMeff=126, tpb=8, src_arg=72, src_off=H_OFF, Tin=2000, Tout=1000, w_arg=72, dst_off=F_OFF,
                         nchunk=4, out='frag', map=map, opt=opt or {}, RB=RB,
                         side=dict(arg0=48, arg1=48, n0=100000, base0=2048, bytes0=512*1024, id0=2048, slots=[(0, 20)]))
def make(kernels):
    hdr = ""; text = ""; desc = ""
    for name, cfg, gen in kernels:
        body = gen(name, cfg)
        hdr += f"; @launch kernel={name} grid=({cfg.grid if hasattr(cfg,'grid') else 256},1,1) block=(256,1,1) lds={cfg.LDS}\n"
        text += kernel_header(name) + body
        accum = (cfg.vgprs + 3) // 4 * 4
        desc += kernel_desc(name, accum + cfg.naccs, 100, accum)
    return hdr + '.amdgcn_target "amdgcn-amd-amdhsa--gfx950"\n.text\n' + text + '.section .rodata,"a"\n.p2align 6\n' + desc
if __name__ == '__main__':
    g = conv3.gen_conv
    open('d12.s', 'w').write(make([('k1_kernel', k1cfg(), g), ('k2_kernel', k2cfg(), g)]))
    open('d12_stamp1.s', 'w').write(make([('k1_kernel', k1cfg({'stamp':1}), g), ('k2_kernel', k2cfg(), g)]))
    open('d12_stamp2.s', 'w').write(make([('k1_kernel', k1cfg(), g), ('k2_kernel', k2cfg({'stamp':1}), g)]))
    open('d12_stamp2n.s', 'w').write(make([('k1_kernel', k1cfg(), g), ('k2_kernel', k2cfg({'stamp':1}, map='n8'), g)]))
```

```python
import sys
sys.path.insert(0, 'gen')
from asmlib import *
from common import *
import conv3, tail
from build3 import k2cfg, make
def k1cfg(opt=None, map='cl', aper=2):
    sd = dict(arg0=16, arg1=32, n0=1920, bytes0=15*512*1024, id0=0, slots=[(0, 8), (1, 30)])
    return conv3.ConvCfg(mode='lds', BMeff=126, tpb=16, src_arg=0, src_off=0, Tin=4000, Tout=2000, w_arg=8, dst_off=H_OFF,
                         dst_bstride=2000*1024, nchunk=4, out='rows', map=map, opt=opt or {}, side=sd, aper=aper)
def full(o1=None, o2=None, o3=None, o4=None, **kw):
    g = conv3.gen_conv
    return make([('k1_kernel', k1cfg(o1), g), ('k2_kernel', k2cfg(o2), g),
                 ('k3_kernel', tail.Cfg(opt=o3 or {}), tail.gen_k3), ('k4_kernel', tail.Cfg(opt=o4 or {}), tail.gen_k4)])
if __name__ == '__main__':
    open('e.s', 'w').write(full())
    open('e_stamp3.s', 'w').write(full(o3={'stamp':1}))
    open('e_stamp4.s', 'w').write(full(o4={'stamp':1}))
```

```python
import struct
def f2h(x):
    return "0x%08x" % struct.unpack("<I", struct.pack("<f", x))[0]
GC0 = -2.0 * 0.7978845608028654 * 1.4426950408889634
GC1 = GC0 * 0.044715
H_OFF   = 0
F_OFF   = 0x400000
FE_OFF  = 0x600000
EB_OFF  = 0xA00000
WP_OFF  = 0x1000000
WP_BYTES = 2176 * 4096
WF_TILE0, WO_TILE0 = 1920, 2048
STAMP_OFF = 0x8000000
TAPSEQ = [0, 2, 4, 6, 8, 10, 12, 14, 1, 3, 5, 7, 9, 11, 13]
```

```python
from asmlib import *
from common import *

NB = 5
RA = 13
NA = 8

class ConvCfg:
    def __init__(s, **kw):
        s.__dict__.update(kw)
        s.nrows = 136
        if not hasattr(s, 'aper'): s.aper = 3
        s.nper = 8
        s.SLAB = s.nrows * 256
        s.E_BASE, s.O_BASE = 0, s.SLAB
        s.B_BASE = 2 * s.SLAB
        s.B_WAVE = NB * 4096
        if s.mode == 'lds':
            s.NF = 4
            s.LDS = s.B_BASE + 4 * s.B_WAVE
        else:
            s.NF = 2
            s.LDS = 2 * s.SLAB

S_SRC, S_W, S_DST = 4, 8, 12
S_WAVE, S_TM, S_NT, S_B, S_T0 = 16, 17, 18, 19, 20
S_BC, S_BO, S_LB, S_A1, S_A2, S_AC = 21, 22, 23, 24, 25, 26
S_SIDE = 60

def stamp_store(e, S_WAVE, nst=7):
    e("s_waitcnt vmcnt(0)")
    e(f"s_memtime s[{40+2*6}:{41+2*6}]"); e(f"s_memrealtime s[{70+2*6}:{71+2*6}]")
    e("s_load_dwordx2 s[56:57], s[0:1], 72")
    e("s_waitcnt lgkmcnt(0)")
    e(f"s_add_u32 s56, s56, {STAMP_OFF}"); e("s_addc_u32 s57, s57, 0")
    e("s_mov_b32 s58, 0x100000"); e("s_mov_b32 s59, 0x00020000")
    for k in range(7):
        e(f"v_mov_b32 v{20+k}, s{40+2*k}")
        e(f"v_mov_b32 v{28+k}, s{70+2*k}")
    e("v_mov_b32 v27, s41"); e("v_mov_b32 v35, s71")
    e(f"s_lshl_b32 s27, s2, 2"); e(f"s_add_u32 s27, s27, s{S_WAVE}"); e("s_lshl_b32 s27, s27, 6")
    e("v_mov_b32 v36, s27")
    e("v_cmp_eq_u32 vcc, 0, v0")
    e("s_and_saveexec_b64 s[30:31], vcc")
    for k in range(4):
        e(f"buffer_store_dwordx4 v[{20+4*k}:{23+4*k}], v36, s[56:59], 0 offen offset:{16*k}")
    e("s_waitcnt vmcnt(0)")

def gelu4(e, x, T, cpair_s, cpair_v):
    def pk(op, d, a_, b_, c_=None, mod=""):
        e(f"v_pk_{op}_f32 {vr(d,2)}, {a_}, {b_}" + (f", {c_}" if c_ else "") + mod)
    for i in (0, 2): pk('mul', T+i, vr(x+i,2), vr(x+i,2))
    for i in (0, 2): pk('fma', T+i, vr(T+i,2), cpair_s, cpair_v)
    for i in (0, 2): pk('mul', T+i, vr(T+i,2), vr(x+i,2))
    for i in range(4): e(f"v_exp_f32 v{T+i}, v{T+i}")
    e("s_nop 0")
    for i in (0, 2): pk('add', T+i, vr(T+i,2), "1.0", None, " op_sel_hi:[1,0]")
    for i in range(4): e(f"v_rcp_f32 v{T+i}, v{T+i}")
    e("s_nop 0")
    for i in (0, 2): pk('mul', T+i, vr(T+i,2), vr(x+i,2))

def gen_conv(name, cfg):
    e = Emit()
    NF = cfg.NF
    direct = cfg.mode == 'dir'
    nA = cfg.nper + 1
    RB = cfg.RB if direct else 3
    V_A = 8
    V_BT = 12
    V_BO = 16
    V_E = 20
    V_O = V_E + nA
    V_AF = (V_O + nA + 3) // 4 * 4
    V_BF = V_AF + RA * 4
    V_SIDE = V_BF + RB * NF * 4
    V_END = V_SIDE + (36 if cfg.side else 0)
    assert V_END <= 256, V_END
    cfg.vgprs = V_END
    cfg.naccs = NA * NF * 4
    nchunk = cfg.nchunk
    nsteps = nchunk * 15
    NP = NA * NF
    Tin, Tout, tpb = cfg.Tin, cfg.Tout, cfg.tpb
    opt = cfg.opt
    stamp = opt.get('stamp')
    def st(k):
        if stamp:
            e(f"s_memtime s[{40+2*k}:{41+2*k}]")
            e(f"s_memrealtime s[{70+2*k}:{71+2*k}]")
    e(f"s_cmp_ge_u32 s2, 256")
    e(f"s_cbranch_scc1 {name}_end")
    st(0)
    e(f"s_load_dwordx2 s[4:5], s[0:1], {cfg.src_arg}")
    e(f"s_load_dwordx2 s[8:9], s[0:1], {cfg.w_arg}")
    e(f"s_load_dwordx2 s[12:13], s[0:1], 72")
    e("v_lshrrev_b32 v1, 6, v0")
    e("v_and_b32 v0, 63, v0")
    nnt = 8 if not direct else 16
    lg = nnt.bit_length() - 1
    if cfg.map == 'n8':
        if nnt == 8:
            e(f"s_and_b32 s{S_NT}, s2, 7"); e(f"s_lshr_b32 s{S_TM}, s2, 3")
        else:
            e(f"s_and_b32 s{S_NT}, s2, 7"); e(f"s_lshl_b32 s{S_NT}, s{S_NT}, 1")
            e("s_bfe_u32 s27, s2, 0x10003"); e(f"s_add_u32 s{S_NT}, s{S_NT}, s27")
            e(f"s_lshr_b32 s{S_TM}, s2, 4")
    else:
        e(f"s_lshr_b32 s27, s2, 3")
        e(f"s_and_b32 s{S_NT}, s27, {nnt-1}")
        e(f"s_lshr_b32 s27, s27, {lg}")
        e(f"s_and_b32 s{S_TM}, s2, 7")
        e(f"s_lshl_b32 s{S_TM}, s{S_TM}, {5-lg}")
        e(f"s_add_u32 s{S_TM}, s{S_TM}, s27")
    e(f"v_readfirstlane_b32 s{S_WAVE}, v1")
    sh = tpb.bit_length() - 1
    e(f"s_lshr_b32 s{S_B}, s{S_TM}, {sh}")
    e(f"s_and_b32 s{S_T0}, s{S_TM}, {tpb-1}")
    e(f"s_mul_i32 s{S_T0}, s{S_T0}, {cfg.BMeff}")
    e("v_and_b32 v1, 15, v0")
    e("v_lshrrev_b32 v2, 4, v0")
    if not direct:
        e("v_lshrrev_b32 v3, 3, v0")
        e("v_and_b32 v4, 4, v3")
        e("v_and_b32 v5, 1, v3")
        e("v_lshlrev_b32 v5, 1, v5")
        e("v_or_b32 v4, v4, v5")
        e("v_bfe_u32 v5, v3, 1, 1")
        e("v_or_b32 v4, v4, v5")
        e("v_lshlrev_b32 v4, 12, v4")
        e(f"s_lshl_b32 s27, s{S_NT}, 7")
        e("v_add_u32 v4, s27, v4")
        e("v_and_b32 v5, 7, v0")
        for i in range(4):
            e(f"v_xor_b32 v6, {2*i}, v5")
            e(f"v_lshl_add_u32 v{V_BO+i}, v6, 4, v4")
        e(f"s_lshl_b32 s{S_BC}, s{S_WAVE}, 15")
        e(f"s_mul_i32 s{S_LB}, s{S_WAVE}, {cfg.B_WAVE}")
        e(f"s_add_u32 s{S_LB}, s{S_LB}, {cfg.B_BASE}")
        e(f"s_mov_b32 s10, {15*512*1024}"); e("s_mov_b32 s11, 0x00020000")
        e("s_waitcnt lgkmcnt(0)")
    else:
        e(f"v_lshlrev_b32 v{V_BT}, 4, v0")
        e(f"s_lshl_b32 s{S_BC}, s{S_WAVE}, 15")
        e(f"s_lshl_b32 s27, s{S_NT}, 11")
        e(f"s_add_u32 s{S_BC}, s{S_BC}, s27")
        e("s_waitcnt lgkmcnt(0)")
        e(f"s_add_u32 s8, s8, {WP_OFF}"); e("s_addc_u32 s9, s9, 0")
        e(f"s_mov_b32 s10, {WP_BYTES}"); e("s_mov_b32 s11, 0x00020000")
    def b_dma(n):
        c, j = divmod(n, 15)
        if not direct:
            off = TAPSEQ[j] * 524288 + c * 131072
            stg = n % NB
            def setup():
                e(f"s_add_u32 s{S_BO}, s{S_BC}, {off}")
                e(f"s_add_u32 m0, s{S_LB}, {stg*4096}")
            def ld(i):
                return lambda: e.vmem(f"buffer_load_dwordx4 v{V_BO+i}, s[{S_W}:{S_W+3}], s{S_BO} offen offset:{i*1024} lds", ('B', n))
            return [setup] + [ld(i) for i in range(4)]
        else:
            off = (TAPSEQ[j] * 16 + 4 * c) * 32768
            def setup():
                e(f"s_add_u32 s{S_BO}, s{S_BC}, {off}")
            def ld(i):
                reg = V_BF + (n % RB) * 8 + i * 4
                return lambda: e.vmem(f"buffer_load_dwordx4 {vr(reg,4)}, v{V_BT}, s[{S_W}:{S_W+3}], s{S_BO} offen offset:{i*1024}", ('B', n))
            return [setup] + [ld(i) for i in range(2)]
    fns = b_dma(0); fns[0](); e("s_nop 0")
    for fn in fns[1:]: fn()
    e(f"s_mul_i32 s27, s{S_B}, {Tin*1024}")
    if cfg.src_off:
        e(f"s_add_u32 s27, s27, {cfg.src_off}")
    e("s_add_u32 s4, s4, s27"); e("s_addc_u32 s5, s5, 0")
    e(f"s_mov_b32 s6, {Tin*1024}"); e("s_mov_b32 s7, 0x00020000")
    e(f"s_lshl_b32 s{S_A1}, s{S_WAVE}, 10")
    e(f"s_and_b32 s{S_A2}, s{S_WAVE}, 1")
    e(f"s_add_u32 s{S_A2}, s{S_A2}, {4*cfg.nper}")
    e(f"s_lshl_b32 s27, s{S_WAVE}, 2")
    e(f"s_add_u32 s27, s27, s{S_T0}")
    e("v_add_u32 v3, s27, v2")
    e("v_lshlrev_b32 v3, 1, v3")
    e("v_subrev_u32 v3, 7, v3")
    e(f"s_mov_b32 s27, {Tin}")
    e("v_mov_b32 v7, 0x80000000")
    def a_voff(dst, rowreg, rowadd, xs):
        e(f"v_add_u32 v6, {rowadd}, v{rowreg}")
        e(f"v_xor_b32 v5, s{xs}, v1")
        e("v_cmp_gt_u32 vcc, s27, v6")
        e("v_lshlrev_b32 v5, 4, v5")
        e(f"v_lshl_add_u32 v6, v6, 10, v5")
        e(f"v_cndmask_b32 v{dst}, v7, v6, vcc")
    def xorconst(j):
        e(f"s_lshr_b32 s28, s{S_WAVE}, 1"); e(f"s_add_u32 s28, s28, {2*j}")
        e("s_and_b32 s28, s28, 7"); e("s_lshl_b32 s28, s28, 1")
    def a_dma(par, c, j):
        base = cfg.E_BASE if par == 0 else cfg.O_BASE
        vreg = (V_E if par == 0 else V_O) + j
        def setup():
            if j < cfg.nper: e(f"s_add_u32 m0, s{S_A1}, {base + j*4096}")
            else:            e(f"s_add_u32 m0, s{S_A2}, {base}")
        def ld():
            e.vmem(f"buffer_load_dwordx4 v{vreg}, s[{S_SRC}:{S_SRC+3}], s{S_AC} offen lds", ('A', par, c))
        return setup, ld
    e(f"s_mov_b32 s{S_AC}, 0")
    for j in range(cfg.nper):
        xorconst(j)
        a_voff(V_E + j, 3, 32*j, 28)
        su, ld = a_dma(0, 0, j); su(); e("s_nop 0"); ld()
    e(f"s_lshl_b32 s29, s{S_A2}, 2")
    e(f"s_add_u32 s29, s29, s{S_T0}")
    e("v_add_u32 v8, s29, v2")
    e("v_lshlrev_b32 v8, 1, v8")
    e("v_subrev_u32 v8, 7, v8")
    e(f"s_lshr_b32 s30, s{S_A2}, 1")
    e("s_and_b32 s30, s30, 7"); e("s_lshl_b32 s30, s30, 1")
    e(f"s_lshl_b32 s{S_A2}, s{S_A2}, 10")
    a_voff(V_E + cfg.nper, 8, 0, 30)
    su, ld = a_dma(0, 0, cfg.nper); su(); e("s_nop 0"); ld()
    LOOK = NB if not direct else RB - 1
    for n in range(1, LOOK):
        fns = b_dma(n); fns[0](); e("s_nop 0")
        for fn in fns[1:]: fn()
    a_voff(V_O + cfg.nper, 8, 1, 30)
    for j in range(cfg.nper):
        xorconst(j)
        a_voff(V_O + j, 3, 32*j + 1, 28)
    e(f"s_lshl_b32 s28, s{S_WAVE}, 2")
    e("v_add_u32 v3, s28, v2")
    e(f"v_lshlrev_b32 v6, 11, v1")
    for k in range(2):
        e(f"v_add_u32 v4, {k}, v1")
        e("v_and_b32 v4, 7, v4")
        e("v_lshlrev_b32 v4, 1, v4")
        e("v_xor_b32 v4, v4, v3")
        e(f"v_lshl_add_u32 v{V_A+k}, v4, 4, v6")
    if not direct:
        e("v_bfe_u32 v3, v0, 2, 2")
        e("v_lshlrev_b32 v4, 3, v3")
        e("v_lshrrev_b32 v5, 1, v2")
        e("v_lshl_add_u32 v4, v5, 2, v4")
        e("v_and_b32 v5, 1, v2")
        e("v_add_u32 v4, v4, v5")
        e("v_lshlrev_b32 v4, 7, v4")
        e("v_and_b32 v5, 3, v0")
        e("v_lshl_add_u32 v4, v5, 3, v4")
        e(f"v_add_u32 v4, s{S_LB}, v4")
        for f in range(4):
            e(f"v_xor_b32 v5, {f}, v3")
            e(f"v_lshl_add_u32 v{V_BT+f}, v5, 5, v4")
    side_ops = {}
    if cfg.side:
        R0 = V_SIDE; O0 = V_SIDE + 16; VS = V_SIDE + 32
        e(f"s_load_dwordx2 s[60:61], s[0:1], {cfg.side['arg0']}")
        e(f"s_load_dwordx2 s[68:69], s[0:1], {cfg.side['arg1']}")
        e(f"s_load_dwordx2 s[64:65], s[0:1], 72")
        e("s_mov_b32 s63, 0x00020000"); e("s_mov_b32 s67, 0x00020000")
        e(f"s_mov_b32 s66, {WP_BYTES}")
        e("s_mov_b32 s84, 0x05040100"); e("s_mov_b32 s85, 0x07060302")
        e("s_waitcnt lgkmcnt(0)")
        e(f"s_add_u32 s64, s64, {WP_OFF}"); e("s_addc_u32 s65, s65, 0")
        e("s_mov_b32 s86, s60"); e("s_mov_b32 s87, s61")
        def side_tile(slot, step0):
            def setup():
                e(f"s_lshl_b32 s88, s2, 2"); e(f"s_add_u32 s88, s88, s{S_WAVE}")
                e(f"s_add_u32 s88, s88, {slot*1024 + cfg.side['id0']}")
                e(f"s_cmp_lt_u32 s88, {cfg.side['n0']}")
                e("s_cselect_b32 s60, s86, s68"); e("s_cselect_b32 s61, s87, s69")
                e(f"s_mov_b32 s62, {512*1024}")
                e(f"s_cselect_b32 s62, {cfg.side['bytes0']}, s62")
                e(f"s_mov_b32 s89, {cfg.side['n0']}")
                e(f"s_cselect_b32 s89, {cfg.side.get('base0', 0)}, s89")
                e("s_movk_i32 s90, 4096")
                e("s_cselect_b32 s90, 2048, s90")
                e("s_cselect_b32 s91, 13, 14")
                e("s_sub_u32 s89, s88, s89")
                e("s_lshr_b32 s92, s89, 3")
                e("s_and_b32 s93, s89, 7")
                e("s_lshl_b32 s93, s93, 7")
                e("s_lshl_b32 s94, s92, 15")
                e("s_lshr_b32 s95, s92, 1"); e("s_lshl_b32 s95, s95, 16")
                e("s_and_b32 s92, s92, 1"); e("s_lshl_b32 s92, s92, 11"); e("s_add_u32 s95, s95, s92")
                e(f"s_cmp_lt_u32 s88, {cfg.side['n0']}")
                e("s_cselect_b32 s94, s94, s95")
                e("s_add_u32 s94, s94, s93")
                e(f"v_lshlrev_b32 v{VS}, s91, v2")
                e(f"v_lshl_add_u32 v{VS}, v1, 3, v{VS}")
                e("s_lshl_b32 s88, s88, 12")
            def ld(j):
                def fn():
                    if j & 1: e("s_add_u32 s95, s94, 1024")
                    elif j: e("s_add_u32 s94, s94, s90")
                    e.vmem(f"buffer_load_dwordx2 {vr(R0+2*j,2)}, v{VS}, s[60:63], s{95 if j & 1 else 94} offen", ('S', slot))
                return fn
            def perm(f, p):
                src = R0 + (f >> 1)
                return lambda: e(f"v_perm_b32 v{O0+4*f+p}, v{src+2*(2*p+1)}, v{src+2*(2*p)}, s{84+(f&1)}")
            def stf(f):
                def fn():
                    e.vmem(f"buffer_store_dwordx4 {vr(O0+4*f,4)}, v{VS+1}, s[64:67], s88 offen offset:{f*1024}", ('SS', slot))
                return fn
            ops = []
            if not direct:
                P4, P8, DW = [3, 7, 22, 26], [3, 7, 11, 18, 22, 26, 28, 29], 5
            else:
                P4, P8, DW = [4, 6, 14, 15], [4, 5, 6, 7, 12, 13, 14, 15], 9
            ops.append((step0, 2, setup))
            for j in range(8): ops.append((step0 + 1 + j // 4, P4[j % 4], ld(j)))
            ops.append((step0 + DW, 2, lambda: (e.wait_vm(lambda t: t == ('S', slot)), e(f"v_lshlrev_b32 v{VS+1}, 4, v0"))))
            k = 0
            for f in range(4):
                for p in range(4):
                    ops.append((step0 + DW + k // 8, P8[k % 8], perm(f, p))); k += 1
            for f in range(4): ops.append((step0 + DW + 2, P4[f], stf(f)))
            for stp, pos, fn in ops:
                side_ops.setdefault(stp, []).append((pos, fn))
        for slot, step0 in cfg.side['slots']:
            side_tile(slot, step0)
    def slot_of(n, a):
        c, j = divmod(n, 15)
        if j < 8: return (j + a) % RA
        return (7 + (j - 8) + a) % RA
    def a_read(n, a):
        if opt.get('noA') and n > 0: return
        c, j = divmod(n, 15)
        par = 0 if j < 8 else 1
        m = j if j < 8 else j - 8
        jj = m + a
        off = (cfg.E_BASE if par == 0 else cfg.O_BASE) + jj * 256
        e.lds(f"ds_read_b128 {vr(V_AF+4*slot_of(n,a),4)}, v{V_A + jj // NA} offset:{off}", ('Af', n, a))
    def b_read(n, t):
        f, h = t >> 1, t & 1
        stg = n % NB
        reg = V_BF + (n % 3) * 16 + f * 4 + h * 2
        e.lds(f"ds_read_b64_tr_b16 {vr(reg,2)}, v{V_BT+f} offset:{stg*4096 + h*256}", ('Bf', n))
    e.wait_vm(lambda t: t == ('B', 0) or (t[0] == 'A'))
    e("s_barrier")
    if not direct:
        for t in range(8): b_read(0, t)
    for a in range(NA): a_read(0, a)
    if stamp:
        e("s_waitcnt lgkmcnt(0)"); e.lg = []
    st(1)
    for n in range(nsteps):
        c, j = divmod(n, 15)
        last = (n == nsteps - 1)
        fill = {p: [] for p in range(NP)}
        phase_last = (j == 7) or (j == 14)
        if not last:
            if not direct:
                fill[0].append(lambda n=n: e.wait_vm(lambda t: t == ('B', n + 1)))
                bpos = [1, 2, 4, 5, 6, 8, 9, 10]
                for t in range(8):
                    fill[bpos[t]].append(lambda n=n, t=t: b_read(n + 1, t))
            if phase_last:
                par = 1 if j == 7 else 0
                cc = c if j == 7 else c + 1
                def bar(n=n, par=par, cc=cc):
                    e.wait_both(lambda t: t == ('A', par, cc), lambda t: t[0] == 'Af' and t[1] <= n)
                    e("s_barrier")
                fill[1 if not direct else 0].insert(0, bar)
                for a in range(NA):
                    fill[NF*a + NF - 1].append(lambda n=n, a=a: a_read(n + 1, a))
            else:
                fill[27 if not direct else 7].append(lambda n=n: a_read(n + 1, NA - 1))
        if n + LOOK < nsteps and not opt.get('noBd'):
            fns = b_dma(n + LOOK)
            dpos = [12, 13, 14, 16, 17] if not direct else [1, 2, 3]
            for fn, p in zip(fns, dpos): fill[p].append(fn)
        adm = []
        per = cfg.aper
        if j >= 14 or j < 7:
            k = (j + 1) % 15 if c > 0 or j == 14 else j
            cc = c + 1 if j == 14 else c
            if cc < nchunk and not (c == 0 and j < 7 and False):
                if c == 0 and j < 7: k = j
                adm = [(1, cc, x) for x in range(per*k, min(per*k + per, nA))]
        else:
            k = j - 7
            if c + 1 < nchunk:
                adm = [(0, c + 1, x) for x in range(per*k, min(per*k + per, nA))]
        if adm:
            pp = [(18, 19), (20, 21), (24, 25)] if not direct else [(8, 9), (10, 11), (12, 13)]
            if adm[0][2] == 0:
                cc = adm[0][1]
                fill[pp[0][0] - 1].append(lambda cc=cc: e(f"s_mov_b32 s{S_AC}, {cc*256}"))
            for (par, cc, x), (p0, p1) in zip(adm, pp):
                su, ld = a_dma(par, cc, x)
                fill[p0].append(su); fill[p1].append(ld)
        for pos, fn in side_ops.get(n, []):
            fill[pos].append(fn)
        if stamp and j == 0 and c > 0 and nchunk == 4:
            st(1 + c)
        for p in range(NP):
            a, f = divmod(p, NF)
            if (a & 1): f = NF - 1 - f
            if p == 0:
                if not direct: e.wait_lg(lambda t: t == ('Bf', n))
                else:          e.wait_vm(lambda t: t == ('B', n))
            if p % NF == 0:
                e.wait_lg(lambda t: t[0] == 'Af' and t[1] == n and t[2] == a)
            acc = ar(4 * (NF * a + f), 4)
            bf = vr(V_BF + (n % RB) * NF * 4 + f * 4, 4)
            af = vr(V_AF + 4 * slot_of(n, a), 4)
            srcc = "0" if n == 0 else acc
            e(f"v_mfma_f32_16x16x32_bf16 {acc}, {bf}, {af}, {srcc}")
            for fn in fill[p]: fn()
    st(5)
    e(f"v_mov_b32 v18, {f2h(GC0)}"); e(f"v_mov_b32 v19, {f2h(GC0)}")
    e(f"s_mov_b32 s28, {f2h(GC1)}"); e(f"s_mov_b32 s29, {f2h(GC1)}")
    e("s_waitcnt lgkmcnt(0)"); e.lg = []
    e("s_barrier")
    if cfg.out == 'rows':
        PW = 128 * 256
        e(f"s_mul_i32 s27, s{S_B}, {cfg.dst_bstride}")
        if cfg.dst_off: e(f"s_add_u32 s27, s27, {cfg.dst_off}")
        e("s_add_u32 s12, s12, s27"); e("s_addc_u32 s13, s13, 0")
        e(f"s_mov_b32 s14, {cfg.dst_bstride}"); e("s_mov_b32 s15, 0x00020000")
        e("v_and_b32 v3, 7, v1")
        e(f"s_mul_i32 s27, s{S_WAVE}, {PW}")
        e("v_lshlrev_b32 v4, 8, v1")
        e("v_add_u32 v4, s27, v4")
        e("v_xor_b32 v5, v3, v2")
        e("v_lshl_add_u32 v8, v5, 4, v4")
        e("v_xor_b32 v5, 4, v5")
        e("v_lshl_add_u32 v9, v5, 4, v4")
        for a in range(NA):
            for f in range(4):
                e.lds(f"ds_write_b128 v{8+(f&1)}, {ar(16*a+4*f,4)} offset:{a*4096 + (f>>1)*128}", ('W',))
        RT = V_AF
        nq = NA
        e(f"s_mul_i32 s27, s{S_WAVE}, {4*NA}")
        e("v_add_u32 v4, s27, v2")
        e("v_lshlrev_b32 v5, 8, v4")
        e("v_xor_b32 v6, v1, v2")
        e("v_lshl_add_u32 v10, v6, 4, v5")
        e("v_xor_b32 v6, 4, v6")
        e("v_lshl_add_u32 v11, v6, 4, v5")
        e(f"v_add_u32 v12, {2*PW}, v10")
        e(f"v_add_u32 v13, {2*PW}, v11")
        e(f"s_lshl_b32 s27, s{S_NT}, 7")
        e("v_lshl_add_u32 v14, v1, 3, s27")
        e("v_mov_b32 v15, 0x80000000")
        e(f"s_sub_u32 s30, {Tout}, s{S_T0}")
        e(f"s_min_u32 s30, s30, {cfg.BMeff}")
        e("s_waitcnt lgkmcnt(0)"); e.lg = []
        e("s_barrier")
        def rd(q):
            base = RT + (q % 3) * 16
            qp = q & 1
            for part in range(4):
                va = (10 if part < 2 else 12) + qp
                e.lds(f"ds_read_b128 {vr(base+4*part,4)}, v{va} offset:{(part&1)*PW + q*1024}", ('R', q))
        rd(0); rd(1)
        for q in range(nq):
            if q + 2 < nq: rd(q + 2)
            e(f"v_add_u32 v16, {4*q}, v4")
            e("v_and_b32 v17, 15, v16")
            e("v_lshrrev_b32 v16, 4, v16")
            e(f"v_lshl_add_u32 v16, v17, 3, v16")
            e("v_cmp_gt_u32 vcc, s30, v16")
            e(f"v_add_u32 v16, s{S_T0}, v16")
            e("v_lshl_add_u32 v17, v16, 10, v14")
            e("v_cndmask_b32 v17, v15, v17, vcc")
            e.wait_lg(lambda t: t == ('R', q))
            b = RT + (q % 3) * 16
            T = V_BF + (q & 1) * 8 + 16
            for i in (0, 2):
                e(f"v_pk_add_f32 {vr(b+i,2)}, {vr(b+i,2)}, {vr(b+4+i,2)}")
                e(f"v_pk_add_f32 {vr(b+8+i,2)}, {vr(b+8+i,2)}, {vr(b+12+i,2)}")
            for i in (0, 2): e(f"v_pk_add_f32 {vr(b+i,2)}, {vr(b+i,2)}, {vr(b+8+i,2)}")
            gelu4(e, b, T, "s[28:29]", "v[18:19]")
            e(f"v_cvt_pk_bf16_f32 v{T+4}, v{T}, v{T+1}")
            e(f"v_cvt_pk_bf16_f32 v{T+5}, v{T+2}, v{T+3}")
            e.vmem(f"buffer_store_dwordx2 {vr(T+4,2)}, v17, s[{S_DST}:{S_DST+3}], 0 offen", ('S',))
    else:
        e(f"s_add_u32 s12, s12, {cfg.dst_off}"); e("s_addc_u32 s13, s13, 0")
        e(f"s_mov_b32 s14, {16*8*16*1024}"); e("s_mov_b32 s15, 0x00020000")
        e("v_lshlrev_b32 v4, 4, v0")
        for d in (1, 2, 3):
            e(f"s_add_u32 s27, s{S_WAVE}, {d}"); e("s_and_b32 s27, s27, 3")
            e(f"s_mul_i32 s30, s27, 12288")
            e(f"v_add_u32 v{8+d}, s30, v4")
        e(f"s_cmp_eq_u32 s{S_WAVE}, 0"); e(f"s_cbranch_scc1 {name}_w0")
        e(f"s_cmp_eq_u32 s{S_WAVE}, 1"); e(f"s_cbranch_scc1 {name}_w1")
        e(f"s_cmp_eq_u32 s{S_WAVE}, 2"); e(f"s_cbranch_scc1 {name}_w2")
        for w in (3, 0, 1, 2):
            e.label(f"{name}_w{w}")
            for d in (1, 2, 3):
                o = (w + d) & 3
                for k in range(4):
                    e(f"ds_write_b128 v{8+d}, {ar(o*16+4*k,4)} offset:{(3-d)*4096 + k*1024}")
            for k in range(16):
                e(f"v_accvgpr_read_b32 v{V_AF+k}, a{w*16+k}")
            if w != 2: e(f"s_branch {name}_wj")
        e.label(f"{name}_wj")
        e(f"s_mul_i32 s30, s{S_WAVE}, 12288")
        e("v_add_u32 v8, s30, v4")
        e("s_waitcnt lgkmcnt(0)")
        e("s_barrier")
        RT = V_AF + 16
        for sl in range(3):
            for k in range(4):
                e.lds(f"ds_read_b128 {vr(RT+16*sl+4*k,4)}, v8 offset:{sl*4096 + k*1024}", ('R', sl))
        e(f"s_lshl_b32 s27, s{S_TM}, 3"); e(f"s_lshl_b32 s30, s{S_WAVE}, 1"); e("s_add_u32 s27, s27, s30")
        e(f"s_lshl_b32 s27, s27, 4"); e(f"s_add_u32 s27, s27, s{S_NT}"); e("s_lshl_b32 s27, s27, 10")
        for sl in range(3):
            e.wait_lg(lambda t: t == ('R', sl))
            for i in range(0, 16, 2):
                e(f"v_pk_add_f32 {vr(V_AF+i,2)}, {vr(V_AF+i,2)}, {vr(RT+16*sl+i,2)}")
        T = RT
        for k in range(4):
            gelu4(e, V_AF + 4*k, T + 4*k, "s[28:29]", "v[18:19]")
        for al in range(2):
            for r in range(4):
                e(f"v_cvt_pk_bf16_f32 v{T+16+4*al+r}, v{T+8*al+r}, v{T+8*al+4+r}")
            e.vmem(f"buffer_store_dwordx4 {vr(T+16+4*al,4)}, v4, s[{S_DST}:{S_DST+3}], s27 offen", ('S',))
            if al == 0: e(f"s_add_u32 s27, s27, {16*1024}")
    if stamp:
        stamp_store(e, S_WAVE)
    e.label(f"{name}_end")
    e("s_endpgm")
    return e.text()
```

```python
from asmlib import *
from common import *
from conv3 import stamp_store

C2 = 2.0 * 1.4426950408889634

class Cfg:
    def __init__(s, **kw): s.__dict__.update(kw)

def gen_k3(name, cfg):
    e = Emit()
    opt = cfg.opt
    stamp = opt.get('stamp')
    S_WAVE = 16
    def st(k):
        if stamp:
            e(f"s_memtime s[{40+2*k}:{41+2*k}]"); e(f"s_memrealtime s[{70+2*k}:{71+2*k}]")
    e("s_cmp_ge_u32 s2, 264")
    e(f"s_cbranch_scc1 {name}_end")
    st(0)
    e("s_load_dwordx2 s[4:5], s[0:1], 72")
    e("v_lshrrev_b32 v1, 6, v0")
    e("v_and_b32 v0, 63, v0")
    e("s_nop 0")
    e(f"v_readfirstlane_b32 s{S_WAVE}, v1")
    e("v_and_b32 v1, 15, v0")
    e("v_lshrrev_b32 v2, 4, v0")
    e("v_lshlrev_b32 v3, 4, v0")
    e("s_cmp_ge_u32 s2, 256")
    e(f"s_cbranch_scc1 {name}_ge")
    e("s_lshr_b32 s17, s2, 3")
    e("s_and_b32 s18, s17, 15")
    e("s_lshr_b32 s17, s17, 4")
    e("s_and_b32 s19, s2, 7"); e("s_lshl_b32 s19, s19, 1"); e("s_add_u32 s17, s17, s19")
    e("s_lshr_b32 s19, s18, 3")
    e("s_and_b32 s18, s18, 7")
    e("s_lshl_b32 s19, s19, 2"); e(f"s_add_u32 s19, s19, s{S_WAVE}")
    e("s_waitcnt lgkmcnt(0)")
    e(f"s_add_u32 s8, s4, {WP_OFF}"); e("s_addc_u32 s9, s5, 0"); e(f"s_mov_b32 s10, {WP_BYTES}"); e("s_mov_b32 s11, 0x00020000")
    e("s_mov_b32 s12, s4"); e("s_mov_b32 s13, s5"); e(f"s_mov_b32 s14, {EB_OFF}"); e("s_mov_b32 s15, 0x00020000")
    e(f"s_lshl_b32 s20, s{S_WAVE}, 17")
    e("s_lshl_b32 s21, s18, 12"); e("s_add_u32 s20, s20, s21"); e(f"s_add_u32 s20, s20, {WF_TILE0*4096}")
    e(f"s_lshl_b32 s22, s{S_WAVE}, 14")
    e("s_lshl_b32 s23, s17, 3"); e("s_add_u32 s23, s23, s19"); e("s_lshl_b32 s23, s23, 14")
    e(f"s_add_u32 s23, s23, {F_OFF}")
    VA = 16
    for kq in range(4):
        e(f"s_add_u32 m0, s22, {kq*4096}")
        e("s_nop 0")
        for f in range(4):
            e.vmem(f"buffer_load_dwordx4 v3, s[8:11], s20 offen offset:{f*1024} lds", ('B',))
        e(f"s_add_u32 s20, s20, {8*4096}")
    for ks in range(16):
        if ks % 4 == 0 and ks: e("s_add_u32 s23, s23, 4096")
        e.vmem(f"buffer_load_dwordx4 {vr(VA+4*ks,4)}, v3, s[12:15], s23 offen offset:{(ks%4)*1024}", ('A', ks))
    st(1)
    e.wait_vm(lambda t: t[0] == 'B')
    e("s_barrier")
    VB = 80
    ACC = 112
    def rdb(ks):
        for f in range(4):
            e.lds(f"ds_read_b128 {vr(VB+(ks&1)*16+4*f,4)}, v3 offset:{ks*4096+f*1024}", ('Bf', ks))
    rdb(0)
    for ks in range(16):
        if ks + 1 < 16: rdb(ks + 1)
        e.wait_both(lambda t: t == ('A', ks), lambda t: t == ('Bf', ks))
        for f in range(4):
            acc = vr(ACC + 4*f, 4)
            e(f"v_mfma_f32_16x16x32_bf16 {acc}, {vr(VB+(ks&1)*16+4*f,4)}, {vr(VA+4*ks,4)}, {'0' if ks == 0 else acc}")
    st(2)
    e("s_lshl_b32 s23, s17, 3"); e("s_add_u32 s23, s23, s19"); e("s_lshl_b32 s23, s23, 3"); e("s_add_u32 s23, s23, s18")
    e("s_lshl_b32 s23, s23, 12"); e(f"s_add_u32 s23, s23, {FE_OFF}")
    e(f"s_mov_b32 s24, {f2h(C2)}")
    e("s_nop 7")
    for q in range(4):
        for f in range(4):
            e(f"v_mul_f32 v{VB+4*q+f}, s24, v{ACC+4*f+q}")
        e.vmem(f"buffer_store_dwordx4 {vr(VB+4*q,4)}, v3, s[12:15], s23 offen offset:{q*1024}", ('S',))
    if stamp: stamp_store(e, S_WAVE)
    e("s_endpgm")
    e.label(f"{name}_ge")
    e.vm = []; e.lg = []
    e("s_sub_u32 s18, s2, 256")
    e("s_load_dwordx2 s[8:9], s[0:1], 40")
    e("s_load_dwordx2 s[12:13], s[0:1], 24")
    e("s_waitcnt lgkmcnt(0)")
    e(f"s_mov_b32 s10, {512*1024}"); e("s_mov_b32 s11, 0x00020000")
    e(f"s_mov_b32 s14, {16*1024}"); e("s_mov_b32 s15, 0x00020000")
    e("s_mov_b32 s84, 0x05040100"); e("s_mov_b32 s85, 0x07060302")
    e("v_lshlrev_b32 v4, 13, v2")
    e("v_lshl_add_u32 v4, v1, 3, v4")
    e("v_lshlrev_b32 v5, 10, v1")
    e("v_lshl_add_u32 v5, v2, 4, v5")
    e(f"s_lshl_b32 s20, s{S_WAVE}, 17")
    e("s_lshl_b32 s21, s18, 7"); e("s_add_u32 s20, s20, s21")
    e(f"s_lshl_b32 s22, s{S_WAVE}, 8")
    R0, O0, GA, ACC = 16, 80, 96, 112
    for kq in range(4):
        for j in range(8):
            if j == 4: e("s_add_u32 s21, s20, 4096")
            so = "s20" if j < 4 else "s21"
            e.vmem(f"buffer_load_dwordx2 {vr(R0+16*kq+2*j,2)}, v4, s[8:11], {so} offen offset:{(j%4)*1024}", ('R', kq))
        e.vmem(f"buffer_load_dwordx4 {vr(GA+4*kq,4)}, v5, s[12:15], s22 offen offset:{kq*64}", ('R', kq))
        e(f"s_add_u32 s20, s20, {32*1024}")
    for kq in range(4):
        e.wait_vm(lambda t: t == ('R', kq))
        for f in range(4):
            src = R0 + 16*kq + (f >> 1)
            for p in range(4):
                e(f"v_perm_b32 v{O0+4*f+p}, v{src+2*(2*p+1)}, v{src+2*(2*p)}, s{84+(f&1)}")
        e("s_nop 1")
        for f in range(4):
            acc = vr(ACC + 4*f, 4)
            e(f"v_mfma_f32_16x16x32_bf16 {acc}, {vr(O0+4*f,4)}, {vr(GA+4*kq,4)}, {'0' if kq == 0 else acc}")
        e("s_nop 3")
    e("s_nop 7")
    e(f"s_lshl_b32 s22, s{S_WAVE}, 12")
    e("v_add_u32 v6, s22, v3")
    for f in range(4):
        e.lds(f"ds_write_b128 v6, {vr(ACC+4*f,4)} offset:{f*1024}", ('W',))
    e("s_waitcnt lgkmcnt(0)"); e.lg = []
    e("s_barrier")
    e(f"s_cmp_lg_u32 s{S_WAVE}, 0")
    e(f"s_cbranch_scc1 {name}_end")
    for w in range(1, 4):
        for f in range(4):
            e.lds(f"ds_read_b128 {vr(R0+16*(w-1)+4*f,4)}, v3 offset:{w*4096+f*1024}", ('R', w))
    e("s_waitcnt lgkmcnt(0)"); e.lg = []
    for w in range(1, 4):
        for i in range(16):
            e(f"v_add_f32 v{ACC+i}, v{ACC+i}, v{R0+16*(w-1)+i}")
    e(f"s_add_u32 s4, s4, {EB_OFF}"); e("s_addc_u32 s5, s5, 0"); e(f"s_mov_b32 s6, {16*2048}"); e("s_mov_b32 s7, 0x00020000")
    e("v_lshlrev_b32 v5, 11, v1")
    e("v_lshl_add_u32 v5, v2, 6, v5")
    e("s_lshl_b32 s21, s18, 8")
    e(f"s_mov_b32 s24, {f2h(C2)}")
    for q in range(4):
        for f in range(4):
            e(f"v_mul_f32 v{O0+4*q+f}, s24, v{ACC+4*f+q}")
        e.vmem(f"buffer_store_dwordx4 {vr(O0+4*q,4)}, v5, s[4:7], s21 offen offset:{q*16}", ('S',))
    e.label(f"{name}_end")
    e("s_endpgm")
    cfg.vgprs = 128; cfg.naccs = 0; cfg.LDS = 65536; cfg.grid = 264
    return e.text()

def gen_k4(name, cfg):
    e = Emit()
    opt = cfg.opt
    stamp = opt.get('stamp')
    S_WAVE = 16
    def st(k):
        if stamp:
            e(f"s_memtime s[{40+2*k}:{41+2*k}]"); e(f"s_memrealtime s[{70+2*k}:{71+2*k}]")
    JT, EBL = 0, 65536
    RB = 3
    V_AJ = 8
    V_L16 = 12; V_A2O = 13; V_EBA = 14; V_JW = 15
    V_AF = 16
    V_BF = 48
    V_P = V_BF + RB * 32
    V_A2 = V_P; V_EB = V_P + 16; V_Z = V_P + 32; V_J = V_P + 48
    V_END = V_P + 56
    cfg.vgprs = V_END; cfg.naccs = 128; cfg.LDS = 65536 + 16384; cfg.grid = 256
    e("s_cmp_ge_u32 s2, 256")
    e(f"s_cbranch_scc1 {name}_end")
    st(0)
    e("s_load_dwordx2 s[4:5], s[0:1], 72")
    e("s_load_dwordx2 s[12:13], s[0:1], 56")
    e("v_lshrrev_b32 v1, 6, v0")
    e("v_and_b32 v0, 63, v0")
    e("s_nop 0")
    e(f"v_readfirstlane_b32 s{S_WAVE}, v1")
    e("v_and_b32 v1, 15, v0")
    e("v_lshrrev_b32 v2, 4, v0")
    e(f"v_lshlrev_b32 v{V_L16}, 4, v0")
    e("s_lshr_b32 s17, s2, 3")
    e("s_and_b32 s18, s17, 15")
    e("s_lshr_b32 s17, s17, 4")
    e("s_and_b32 s19, s2, 7"); e("s_lshl_b32 s19, s19, 1"); e("s_add_u32 s17, s17, s19")
    e("s_lshr_b32 s19, s18, 1")
    e("s_and_b32 s18, s18, 1")
    e("s_lshr_b32 s20, s17, 3")
    e("s_waitcnt lgkmcnt(0)")
    e(f"s_add_u32 s8, s4, {WP_OFF + WO_TILE0*4096}"); e("s_addc_u32 s9, s5, 0"); e(f"s_mov_b32 s10, {128*4096}"); e("s_mov_b32 s11, 0x00020000")
    e(f"s_mov_b32 s6, {EB_OFF + 32768}"); e("s_mov_b32 s7, 0x00020000")
    e(f"s_lshl_b32 s21, s20, 14"); e(f"s_lshl_b32 s22, s{S_WAVE}, 12"); e("s_add_u32 s21, s21, s22"); e(f"s_add_u32 s21, s21, {EB_OFF}")
    e(f"s_add_u32 m0, s22, {EBL}")
    e("s_nop 0")
    for i in range(4):
        e.vmem(f"buffer_load_dwordx4 v{V_L16}, s[4:7], s21 offen offset:{i*1024} lds", ('EB',))
    e("v_and_b32 v3, 7, v0")
    e("v_bfe_u32 v4, v0, 3, 1")
    e("v_lshlrev_b32 v4, 11, v4")
    e("s_lshl_b32 s22, s18, 3")
    e("v_lshl_add_u32 v5, v2, 4, v3")
    e("v_add_u32 v5, s22, v5")
    e(f"v_lshl_add_u32 v{V_A2O}, v5, 4, v4")
    e("s_lshl_b32 s23, s17, 3"); e("s_add_u32 s23, s23, s19"); e("s_lshl_b32 s23, s23, 3")
    e(f"s_and_b32 s22, s{S_WAVE}, 1"); e("s_add_u32 s23, s23, s22"); e("s_lshl_b32 s23, s23, 12"); e(f"s_add_u32 s23, s23, {FE_OFF}")
    def a2_load(ch):
        base = V_A2 + (ch & 1) * 8
        if ch: e(f"s_add_u32 s23, s23, {2*4096}")
        for h in range(2):
            e.vmem(f"buffer_load_dwordx4 {vr(base+4*h,4)}, v{V_A2O}, s[4:7], s23 offen offset:{h*1024}", ('A2', ch))
    a2_load(0)
    e(f"s_lshl_b32 s24, s{S_WAVE}, 13")
    def b_load(ks):
        ops = []
        def setup():
            e(f"s_add_u32 s25, s24, {ks*32768}"); e(f"s_add_u32 s26, s24, {ks*32768+4096}")
        ops.append(setup)
        for fi in range(8):
            reg = V_BF + (ks % RB) * 32 + 4 * fi
            ops.append(lambda reg=reg, fi=fi: e.vmem(f"buffer_load_dwordx4 {vr(reg,4)}, v{V_L16}, s[8:11], s{25 + (fi >> 2)} offen offset:{(fi&3)*1024}", ('B', ks)))
        return ops
    for ks in range(RB - 1):
        for fn in b_load(ks): fn()
    e(f"s_lshr_b32 s21, s{S_WAVE}, 1"); e("s_lshl_b32 s27, s21, 13")
    e(f"s_and_b32 s22, s{S_WAVE}, 1"); e("s_lshl_b32 s22, s22, 3")
    e("v_lshrrev_b32 v4, 3, v0")
    e("v_add_u32 v4, s22, v4")
    e("v_lshlrev_b32 v5, 5, v4")
    e(f"s_add_u32 s27, s27, {EBL}")
    e(f"v_add_u32 v{V_EBA}, s27, v5")
    e("v_lshlrev_b32 v5, 1, v3")
    e("v_xor_b32 v5, v5, v4")
    e("v_lshlrev_b32 v5, 4, v5")
    e("s_lshl_b32 s27, s21, 15")
    e("v_lshl_add_u32 v5, v3, 10, v5")
    e(f"v_add_u32 v{V_JW}, s27, v5")
    e("v_and_b32 v4, 7, v1"); e("v_lshlrev_b32 v4, 1, v4")
    for kq in range(4):
        e(f"v_add_u32 v5, {4*kq}, v2")
        e("v_xor_b32 v5, v5, v4")
        e("v_lshlrev_b32 v5, 4, v5")
        e(f"v_lshl_add_u32 v{V_AJ+kq}, v1, 10, v5")
    e("s_mov_b32 s28, 0xc0000000"); e("s_mov_b32 s29, 0xc0000000")
    def produce(ch):
        ops = []
        A2 = V_A2 + (ch & 1) * 8
        def ebrd(ul):
            base = V_EB + (ul & 1) * 8
            def fn():
                for h in range(2):
                    e.lds(f"ds_read_b128 {vr(base+4*h,4)}, v{V_EBA} offset:{ul*2048 + ch*512 + h*16}", ('EBr', ch, ul))
            return fn
        ops.append(ebrd(0))
        for ul in range(4):
            EB = V_EB + (ul & 1) * 8
            if ul + 1 < 4: ops.append(ebrd(ul + 1))
            def w(ul=ul):
                e.wait_both((lambda t: t == ('A2', ch)) if ul == 0 else (lambda t: False), lambda t: t == ('EBr', ch, ul))
            ops.append(w)
            for i in range(0, 8, 2):
                ops.append(lambda i=i, EB=EB: e(f"v_pk_add_f32 {vr(V_Z+i,2)}, {vr(A2+i,2)}, {vr(EB+i,2)}"))
            for i in range(8):
                ops.append(lambda i=i: e(f"v_exp_f32 v{V_Z+i}, v{V_Z+i}"))
            for i in range(0, 8, 2):
                ops.append(lambda i=i: e(f"v_pk_add_f32 {vr(V_Z+i,2)}, {vr(V_Z+i,2)}, 1.0 op_sel_hi:[1,0]"))
            for i in range(8):
                ops.append(lambda i=i: e(f"v_rcp_f32 v{V_Z+i}, v{V_Z+i}"))
            for i in range(0, 8, 2):
                ops.append(lambda i=i: e(f"v_pk_fma_f32 {vr(V_Z+i,2)}, {vr(V_Z+i,2)}, s[28:29], 1.0 op_sel_hi:[1,1,0]"))
            J = V_J + (ul & 1) * 4
            for i in range(4):
                ops.append(lambda i=i, J=J: e(f"v_cvt_pk_bf16_f32 v{J+i}, v{V_Z+2*i}, v{V_Z+2*i+1}"))
            ops.append(lambda ul=ul, J=J: e.lds(f"ds_write_b128 v{V_JW}, {vr(J,4)} offset:{ul*8192 + ch*256}", ('JW', ch)))
        return ops
    e.wait_vm(lambda t: t == ('EB',))
    e("s_barrier")
    ops = produce(0)
    for i, fn in enumerate(ops):
        fn()
    a2_load(1)
    e.wait_lg(lambda t: t[0] == 'JW')
    e("s_barrier")
    def a_read(ks, ap):
        reg = V_AF + (ks & 1) * 16 + 4 * ap
        e.lds(f"ds_read_b128 {vr(reg,4)}, v{V_AJ + (ks & 3)} offset:{ap*16384 + (ks >> 2)*256}", ('Af', ks))
    for ap in range(4): a_read(0, ap)
    st(1)
    for ks in range(16):
        ch = ks >> 2
        fill = {p: [] for p in range(32)}
        if ch + 1 < 4:
            ops = produce(ch + 1)
            n = len(ops)
            kq = ks & 3
            tot = 3 * 32 + 20
            mine = [(i, fn) for i, fn in enumerate(ops) if kq * 32 <= i * tot // n < (kq + 1) * 32]
            for i, fn in mine:
                fill[(i * tot // n) - kq * 32].append(fn)
            if kq == 0 and ch + 2 < 4:
                fill[30].append(lambda ch=ch: a2_load(ch + 2))
        if ks + RB - 1 < 16:
            bl = b_load(ks + RB - 1)
            for fn, p in zip(bl, [0, 1, 4, 8, 12, 16, 20, 24, 28]): fill[p].append(fn)
        if ks + 1 < 16:
            if (ks & 3) == 3:
                def bar():
                    e.wait_lg(lambda t: t[0] == 'JW')
                    e("s_barrier")
                fill[22].append(bar)
                apos = [23, 25, 27, 29]
            else:
                apos = [5, 13, 21, 29]
            for ap in range(4): fill[apos[ap]].append(lambda ks=ks, ap=ap: a_read(ks + 1, ap))
        if stamp and ks in (4, 8, 12): st(1 + ks // 4)
        for p in range(32):
            ap, fi = p >> 3, p & 7
            if ap & 1: fi = 7 - fi
            if p == 0:
                e.wait_both(lambda t: t == ('B', ks), lambda t: t == ('Af', ks))
            acc = ar(4 * (8 * ap + fi), 4)
            e(f"v_mfma_f32_16x16x32_bf16 {acc}, {vr(V_BF + (ks % RB)*32 + 4*fi, 4)}, {vr(V_AF + (ks&1)*16 + 4*ap, 4)}, {'0' if ks == 0 else acc}")
            for fn in fill[p]: fn()
    st(5)
    e("s_waitcnt lgkmcnt(0)"); e.lg = []
    e("s_barrier")
    e("v_and_b32 v4, 7, v1")
    e("v_lshlrev_b32 v5, 1, v2")
    e(f"s_lshl_b32 s22, s{S_WAVE}, 4")
    e("v_add_u32 v5, s22, v5")
    e("v_xor_b32 v6, v5, v4")
    e("v_lshlrev_b32 v6, 4, v6"); e("v_lshl_add_u32 v8, v1, 10, v6")
    e("v_xor_b32 v8, v8, v8") if False else None
    e("v_xor_b32 v9, 16, v8")
    T = V_BF
    for ap in range(4):
        for hb in range(2):
            tb = T + ((ap * 2 + hb) % 4) * 24
            for k in range(16):
                e(f"v_accvgpr_read_b32 v{tb+k}, a{4*(8*ap+4*hb)+k}")
            for r in range(4):
                e(f"v_cvt_pk_bf16_f32 v{tb+16+2*r}, v{tb+r}, v{tb+4+r}")
                e(f"v_cvt_pk_bf16_f32 v{tb+16+2*r+1}, v{tb+8+r}, v{tb+12+r}")
            e.lds(f"ds_write_b128 v8, {vr(tb+16,4)} offset:{ap*16384 + hb*128}", ('W',))
            e.lds(f"ds_write_b128 v9, {vr(tb+20,4)} offset:{ap*16384 + hb*128}", ('W',))
    e(f"s_mul_i32 s21, s20, {1000*8*1024}")
    e("s_add_u32 s12, s12, s21"); e("s_addc_u32 s13, s13, 0"); e(f"s_mov_b32 s14, {1000*8*1024}"); e("s_mov_b32 s15, 0x00020000")
    e("s_and_b32 s21, s17, 7"); e("s_mul_i32 s21, s21, 126")
    e("s_lshl_b32 s22, s18, 6"); e("s_add_u32 s22, s22, s19")
    e("s_waitcnt lgkmcnt(0)"); e.lg = []
    e("s_barrier")
    e(f"s_lshl_b32 s23, s{S_WAVE}, 14")
    for i in range(16):
        tl = i & 7
        e(f"v_xor_b32 v4, {tl}, v0")
        e(f"v_lshlrev_b32 v4, 4, v4")
        e(f"v_add_u32 v4, s23, v4")
        e.lds(f"ds_read_b128 {vr(T+4*i,4)}, v4 offset:{i*1024}", ('R', i))
    for i in range(16):
        tl = i & 7
        e(f"s_add_u32 s24, s22, {8*tl}")
        e("s_add_u32 s25, s24, s21")
        e("s_lshl_b32 s25, s25, 3")
        e(f"s_lshl_b32 s26, s{S_WAVE}, 1"); e("s_add_u32 s25, s25, s26")
        if i >> 3: e("s_add_u32 s25, s25, 1")
        e("s_lshl_b32 s25, s25, 10")
        e("s_cmp_lt_u32 s24, 126")
        e("s_cselect_b32 s25, s25, 0x7ffff000")
        e.wait_lg(lambda t: t == ('R', i))
        e.vmem(f"buffer_store_dwordx4 {vr(T+4*i,4)}, v{V_L16}, s[12:15], s25 offen", ('S',))
    if stamp: stamp_store(e, S_WAVE)
    e.label(f"{name}_end")
    e("s_endpgm")
    return e.text()
```

```python
import sys
sys.path.insert(0, 'gen')
HDR = open('standalone__seq2seq_rnn_t_joint__speech.s.ref').read().split('; Override launch geometry')[0]
def write(asm, path='standalone__seq2seq_rnn_t_joint__speech.s'):
    open(path, 'w').write(HDR + asm)
if __name__ == '__main__':
    import build4
    write(build4.full())
```
